```python
import torch

def _softmax(x, axis=-1):
    return torch.softmax(x, dim=axis)
def _gelu(x):
    return torch.nn.functional.gelu(x, approximate="tanh")
def _silu(x):
    return torch.nn.functional.silu(x)
def _sigmoid(x):
    return torch.sigmoid(x)
def _layernorm(x, axis=-1, eps=1e-5):
    m = x.mean(dim=axis, keepdim=True)
    v = x.var(dim=axis, keepdim=True, unbiased=False)
    return (x - m) / torch.sqrt(v + eps)
def _scatter_add(tgt, idx, src, axis=0):
    return tgt.clone().index_add_(axis, idx, src)
def _segment_sum(src, seg, n):
    out = torch.zeros((n,) + src.shape[1:], dtype=src.dtype)
    return out.index_add_(0, seg, src)
def _pad(x, pw):
    flat = tuple(v for pair in reversed(pw) for v in pair)
    return torch.nn.functional.pad(x, flat)

kernel_name = 'recurrent_scan__sliding_block_cached__mixer_channel_mlp__decode'

def setup_inputs():

    _w = (lambda a: (lambda t: t.to(torch.bfloat16) if t.is_floating_point() else t)(torch.as_tensor(a)))
    def _A_setup():
        B, Sq, D = 1, 1, 512
        Hq, Hkv, Sk, Dh = 32, 8, 65536, 128
        assert Hq % Hkv == 0, (Hq, Hkv)
        return {
            "x": _w((lambda *s: torch.randn(*s, dtype=torch.bfloat16) * 0.1)(B, Sq, D)),
            "k_cache": _w((lambda *s: torch.randn(*s, dtype=torch.bfloat16) * 0.8)(B, Hkv, Sk, Dh)),
            "v_cache": _w((lambda *s: torch.randn(*s, dtype=torch.bfloat16) * 3.2)(B, Hkv, Sk, Dh)),
            "wq": _w((lambda *s: torch.randn(*s, dtype=torch.bfloat16) * 0.8)(D, Hq * Dh) * (D ** -0.5)),
            "wo": _w((lambda *s: torch.randn(*s, dtype=torch.bfloat16) * 3.2)(Hq * Dh, D) * ((Hq * Dh) ** -0.5)),
        }
    _A_in = _A_setup()

    def _B_setup():
        B, S, D, F = 1, 1, 512, 1792
        return {
            "x": _w((lambda *s: torch.randn(*s, dtype=torch.bfloat16) * 0.1)(B, S, D)),
            "w1": _w((lambda *s: torch.randn(*s, dtype=torch.bfloat16) * 3.2)(D, F) * (D ** -0.5)),
            "b1": _w((lambda *s: torch.randn(*s, dtype=torch.bfloat16) * 3.2)(F)),
            "w2": _w((lambda *s: torch.randn(*s, dtype=torch.bfloat16) * 3.2)(F, D) * (F ** -0.5)),
            "b2": _w((lambda *s: torch.randn(*s, dtype=torch.bfloat16) * 3.2)(D)),
        }
    _B_in = _B_setup()

    return {
        "A_x": _A_in["x"],
        "A_k_cache": _A_in["k_cache"],
        "A_v_cache": _A_in["v_cache"],
        "A_wq": _A_in["wq"],
        "A_wo": _A_in["wo"],
        "B_x": _B_in["x"],
        "B_w1": _B_in["w1"],
        "B_b1": _B_in["b1"],
        "B_w2": _B_in["w2"],
        "B_b2": _B_in["b2"],
    }

def reference(A_x, A_k_cache, A_v_cache, A_wq, A_wo, B_x, B_w1, B_b1, B_w2, B_b2):
    def _A_ref(x, k_cache, v_cache, wq, wo):
        B, Sq, D = x.shape
        Hq, Dh = 32, 128
        Hkv, Sk = k_cache.shape[1], k_cache.shape[2]
        W = min(4096, max(256, Sk // 4))
        rep = Hq // Hkv
        q = (lambda x, *d: x.permute(*d))((x @ wq).reshape(B, Sq, Hq, Dh), 0, 2, 1, 3)
        k = (lambda x, n, axis: torch.repeat_interleave(x, n, dim=axis))(k_cache[:, :, Sk - W:, :], rep, axis=1)
        v = (lambda x, n, axis: torch.repeat_interleave(x, n, dim=axis))(v_cache[:, :, Sk - W:, :], rep, axis=1)
        scores = torch.einsum("bhqd,bhkd->bhqk", q, k) * (Dh ** -0.5)
        p = _softmax(scores, axis=-1)
        o = torch.einsum("bhqk,bhkd->bhqd", p, v)
        return (lambda x, *d: x.permute(*d))(o, 0, 2, 1, 3).reshape(B, Sq, Hq * Dh) @ wo

    def _B_ref(x, w1, b1, w2, b2):
        y = _layernorm(x, axis=-1)
        h = _gelu(torch.einsum("bsd,df->bsf", y, w1) + b1)
        return torch.einsum("bsf,fd->bsd", h, w2) + b2

    x = A_x
    xn = _layernorm(x, axis=-1)
    s = _A_ref(xn, A_k_cache, A_v_cache, A_wq, A_wo)
    g = _silu(_B_ref(xn, B_w1, B_b1, B_w2, B_b2))
    return x + s * g
```

```python
import sys
sf = sys.argv[1]; lf = sys.argv[2]; grouping = sys.argv[3]; outname = sys.argv[4]
pre = int(sys.argv[5]) if len(sys.argv) > 5 else 1
sf = "" if sf == "-" else " " + sf
lf = "" if lf == "-" else " " + lf
K = "recurrent_scan__sliding_block_cached__mixer_channel_mlp__decode_kernel"
o = []; A = o.append
A(f"; @launch grid=(256,1,1) block=(256,1,1) lds=0")
A('.amdgcn_target "amdgcn-amd-amdhsa--gfx950"\n.text\n.globl %s\n.p2align 8\n.type %s,@function\n%s:' % (K,K,K))
A("  s_memrealtime s[40:41]")
A("  s_cmp_ge_u32 s2, 256")
A("  s_cbranch_scc1 L_end")
A("  s_load_dwordx2 s[28:29], s[0:1], 96")
if grouping == "same":
    A("  s_and_b32 s30, s2, 7"); A("  s_lshr_b32 s31, s2, 3")
else:
    A("  s_lshr_b32 s30, s2, 5"); A("  s_and_b32 s31, s2, 31")
A("  s_lshl_b32 s32, s30, 17")
A("  s_add_u32 s32, s32, 0x100000")
A("  s_lshl_b32 s33, s31, 9")
A("  s_add_u32 s33, s33, s32")
A("  v_lshrrev_b32 v1, 5, v0")
A("  v_lshlrev_b32 v1, 14, v1")
A("  v_and_b32 v2, 31, v0")
A("  v_lshl_add_u32 v1, v2, 4, v1")
A("  v_add_u32 v1, s33, v1")
A("  s_lshr_b32 s34, s31, 2")
A("  s_lshl_b32 s34, s34, 14")
A("  s_add_u32 s34, s34, s32")
A("  v_lshlrev_b32 v2, 4, v0")
A("  v_add_u32 v2, s34, v2")
A("  v_add_u32 v3, 0x1000, v2")
A("  v_add_u32 v24, 0x2000, v2")
A("  v_add_u32 v25, 0x3000, v2")
A("  s_waitcnt lgkmcnt(0)")
if pre:
    A(f"  global_load_dwordx4 v[8:11], v2, s[28:29]{lf}")
    A(f"  global_load_dwordx4 v[12:15], v3, s[28:29]{lf}")
    A(f"  global_load_dwordx4 v[16:19], v24, s[28:29]{lf}")
    A(f"  global_load_dwordx4 v[20:23], v25, s[28:29]{lf}")
    A("  s_waitcnt vmcnt(0)")
A("  s_add_u32 s36, s40, 2560")
A("  s_and_b32 s36, s36, 0xfffff800")
A("  s_mov_b32 s37, 0")
A("L_wait:")
A("  s_memrealtime s[42:43]")
A("  s_waitcnt lgkmcnt(0)")
A("  s_add_u32 s37, s37, 1")
A("  s_cmp_gt_u32 s37, 100000")
A("  s_cbranch_scc1 L_go")
A("  s_sub_u32 s38, s42, s36")
A("  s_cmp_lt_i32 s38, 0")
A("  s_cbranch_scc1 L_wait")
A("L_go:")
A("  v_mov_b32 v4, v0")
A("  v_mov_b32 v5, s36")
A("  v_mov_b32 v6, v0")
A("  v_mov_b32 v7, s36")
A("  s_memrealtime s[44:45]")
A(f"  global_store_dwordx4 v1, v[4:7], s[28:29]{sf}")
A("  s_mov_b32 s37, 0")
A("L_poll:")
A(f"  global_load_dwordx4 v[8:11], v2, s[28:29]{lf}")
A(f"  global_load_dwordx4 v[12:15], v3, s[28:29]{lf}")
A(f"  global_load_dwordx4 v[16:19], v24, s[28:29]{lf}")
A(f"  global_load_dwordx4 v[20:23], v25, s[28:29]{lf}")
A("  s_add_u32 s37, s37, 1")
A("  s_cmp_gt_u32 s37, 2000")
A("  s_cbranch_scc1 L_done")
A("  s_waitcnt vmcnt(0)")
A("  v_xor_b32 v9, s36, v9")
A("  v_xor_b32 v11, s36, v11")
A("  v_xor_b32 v13, s36, v13")
A("  v_xor_b32 v15, s36, v15")
A("  v_xor_b32 v17, s36, v17")
A("  v_xor_b32 v19, s36, v19")
A("  v_xor_b32 v21, s36, v21")
A("  v_xor_b32 v23, s36, v23")
A("  v_or3_b32 v9, v9, v11, v13")
A("  v_or3_b32 v15, v15, v17, v19")
A("  v_or3_b32 v9, v9, v21, v23")
A("  v_or_b32 v9, v9, v15")
A("  v_cmp_ne_u32 vcc, 0, v9")
A("  s_cbranch_vccnz L_poll")
A("L_done:")
A("  s_memrealtime s[46:47]")
A("  s_getreg_b32 s3, hwreg(HW_REG_XCC_ID)")
A("  s_waitcnt vmcnt(0) lgkmcnt(0)")
A("  v_mov_b32 v2, 0")
A("  v_writelane_b32 v2, s40, 0")
A("  v_writelane_b32 v2, s36, 1")
A("  v_writelane_b32 v2, s44, 2")
A("  v_writelane_b32 v2, s46, 3")
A("  v_writelane_b32 v2, s37, 4")
A("  v_writelane_b32 v2, s3, 63")
A("  s_lshl_b32 s38, s2, 10")
A("  v_lshlrev_b32 v3, 2, v0")
A("  v_add_u32 v3, s38, v3")
A("  global_store_dword v3, v2, s[28:29]")
A("L_end:")
A("  s_endpgm")
A(""".section .rodata,"a"
.p2align 6
.amdhsa_kernel %s
  .amdhsa_next_free_vgpr 32
  .amdhsa_next_free_sgpr 96
  .amdhsa_accum_offset 32
  .amdhsa_group_segment_fixed_size 0
  .amdhsa_kernarg_size 104
  .amdhsa_user_sgpr_count 2
  .amdhsa_user_sgpr_kernarg_segment_ptr 1
  .amdhsa_system_sgpr_workgroup_id_x 1
.end_amdhsa_kernel""" % K)
open(outname, "w").write("\n".join(o) + "\n")
```

```python
import sys
sf = sys.argv[1]; lf = sys.argv[2]; share = int(sys.argv[3]); gap = int(sys.argv[4]); outname = sys.argv[5]
sf = "" if sf == "-" else " " + sf
lf = "" if lf == "-" else " " + lf
K = "recurrent_scan__sliding_block_cached__mixer_channel_mlp__decode_kernel"
o = []; A = lambda s: o.append("  " + s)
o.append("; @launch grid=(256,1,1) block=(64,1,1) lds=0")
o.append('.amdgcn_target "amdgcn-amd-amdhsa--gfx950"\n.text\n.globl %s\n.p2align 8\n.type %s,@function\n%s:' % (K,K,K))
A("s_memrealtime s[40:41]")
A("s_cmp_ge_u32 s2, 256"); A("s_cbranch_scc1 L_end")
A("s_load_dwordx2 s[28:29], s[0:1], 96")
A("s_and_b32 s30, s2, 7"); A("s_lshr_b32 s31, s2, 3"); A("s_and_b32 s32, s31, 15")
A("s_cmp_ge_u32 s31, 16"); A(f"s_cselect_b32 s33, {(~(share-1)) & 15}, 15"); A("s_and_b32 s32, s32, s33")
A("s_lshl_b32 s34, s30, 14"); A("s_lshl_b32 s35, s32, 10"); A("s_add_u32 s34, s34, s35"); A("s_add_u32 s34, s34, 0x100000")
A("v_lshlrev_b32 v1, 4, v0"); A("v_add_u32 v1, s34, v1")
A("s_waitcnt lgkmcnt(0)")
A("s_add_u32 s37, s40, 2560"); A("s_and_b32 s37, s37, 0xfffff800")
A("s_mov_b32 s44, 0"); A("s_mov_b32 s46, 0"); A("s_mov_b32 s38, 0"); A("s_mov_b32 s48, 0"); A("s_mov_b32 s52, 0")
A("s_mov_b32 s50, s37")
A("s_cmp_lt_u32 s31, 16"); A("s_cbranch_scc1 L_wait")
A("s_sub_u32 s50, s37, 150")
o.append("L_wait:")
A("s_memrealtime s[42:43]"); A("s_waitcnt lgkmcnt(0)")
A("s_add_u32 s38, s38, 1"); A("s_cmp_gt_u32 s38, 100000"); A("s_cbranch_scc1 L_go")
A("s_sub_u32 s39, s42, s50"); A("s_cmp_lt_i32 s39, 0"); A("s_cbranch_scc1 L_wait")
o.append("L_go:")
A("s_mov_b32 s38, 0")
A("s_cmp_ge_u32 s31, 16"); A("s_cbranch_scc1 L_cons")
A("v_mov_b32 v4, s37"); A("v_mov_b32 v5, s37"); A("v_mov_b32 v6, s37"); A("v_mov_b32 v7, s37")
A("s_memtime s[44:45]")
A(f"global_store_dwordx4 v1, v[4:7], s[28:29]{sf}")
A("s_waitcnt vmcnt(0)")
A("s_memtime s[46:47]")
A("s_branch L_fin")
o.append("L_cons:")
o.append("L_poll:")
A("s_memtime s[48:49]")
A(f"global_load_dwordx4 v[8:11], v1, s[28:29]{lf}")
A("s_waitcnt vmcnt(0)")
A("v_cmp_ne_u32 vcc, s37, v11")
A("s_cbranch_vccz L_done")
if gap: A(f"s_sleep {gap}")
A("s_add_u32 s38, s38, 1"); A("s_cmp_lt_u32 s38, 3000"); A("s_cbranch_scc1 L_poll")
o.append("L_done:")
A("s_memtime s[46:47]")
o.append("L_fin:")
A("s_waitcnt vmcnt(0) lgkmcnt(0)")
A("v_mov_b32 v2, 0")
A("v_writelane_b32 v2, s40, 0"); A("v_writelane_b32 v2, s37, 1"); A("v_writelane_b32 v2, s44, 2"); A("v_writelane_b32 v2, s46, 3"); A("v_writelane_b32 v2, s38, 4"); A("v_writelane_b32 v2, s48, 5"); A("v_writelane_b32 v2, s32, 6")
A("s_lshl_b32 s39, s2, 8"); A("v_lshlrev_b32 v3, 2, v0"); A("v_add_u32 v3, s39, v3")
A("global_store_dword v3, v2, s[28:29]")
o.append("L_end:"); A("s_endpgm")
o.append(""".section .rodata,"a"
.p2align 6
.amdhsa_kernel %s
  .amdhsa_next_free_vgpr 32
  .amdhsa_next_free_sgpr 96
  .amdhsa_accum_offset 32
  .amdhsa_group_segment_fixed_size 0
  .amdhsa_kernarg_size 104
  .amdhsa_user_sgpr_count 2
  .amdhsa_user_sgpr_kernarg_segment_ptr 1
  .amdhsa_system_sgpr_workgroup_id_x 1
.end_amdhsa_kernel""" % K)
open(outname, "w").write("\n".join(o) + "\n")
```
